```python
import torch

def _softmax(x, axis=-1):
    return torch.softmax(x, dim=axis)
def _gelu(x):
    return torch.nn.functional.gelu(x, approximate="tanh")
def _silu(x):
    return torch.nn.functional.silu(x)
def _sigmoid(x):
    return torch.sigmoid(x)
def _layernorm(x, axis=-1, eps=1e-5):
    m = x.mean(dim=axis, keepdim=True)
    v = x.var(dim=axis, keepdim=True, unbiased=False)
    return (x - m) / torch.sqrt(v + eps)
def _scatter_add(tgt, idx, src, axis=0):
    return tgt.clone().index_add_(axis, idx, src)
def _segment_sum(src, seg, n):
    out = torch.zeros((n,) + src.shape[1:], dtype=src.dtype)
    return out.index_add_(0, seg, src)
def _pad(x, pw):
    flat = tuple(v for pair in reversed(pw) for v in pair)
    return torch.nn.functional.pad(x, flat)

kernel_name = 'standalone__gqa_block_cached__near_ridge'

def setup_inputs():

    _w = (lambda a: (lambda t: t.to(torch.bfloat16) if t.is_floating_point() else t)(torch.as_tensor(a)))
    B, Sq, D = 8, 128, 640
    Hq, Hkv, Sk, Dh = 32, 32, 512, 128
    assert Hq % Hkv == 0, (Hq, Hkv)
    return {
        "x": _w((lambda *s: torch.randn(*s, dtype=torch.bfloat16) * 0.8)(B, Sq, D)),
        "k_cache": _w((lambda *s: torch.randn(*s, dtype=torch.bfloat16) * 0.8)(B, Hkv, Sk, Dh)),
        "v_cache": _w((lambda *s: torch.randn(*s, dtype=torch.bfloat16) * 0.05)(B, Hkv, Sk, Dh)),
        "wq": _w((lambda *s: torch.randn(*s, dtype=torch.bfloat16) * 0.8)(D, Hq * Dh) * (D ** -0.5)),
        "wo": _w((lambda *s: torch.randn(*s, dtype=torch.bfloat16) * 0.05)(Hq * Dh, D) * ((Hq * Dh) ** -0.5)),
    }

def reference(x, k_cache, v_cache, wq, wo):
    B, Sq, D = x.shape
    Hq, Dh = 32, 128
    Hkv = k_cache.shape[1]
    rep = Hq // Hkv
    q = (lambda x, *d: x.permute(*d))((x @ wq).reshape(B, Sq, Hq, Dh), 0, 2, 1, 3)
    k = (lambda x, n, axis: torch.repeat_interleave(x, n, dim=axis))(k_cache, rep, axis=1)
    v = (lambda x, n, axis: torch.repeat_interleave(x, n, dim=axis))(v_cache, rep, axis=1)
    scores = torch.einsum("bhqd,bhkd->bhqk", q, k) * (Dh ** -0.5)
    p = _softmax(scores, axis=-1)
    o = torch.einsum("bhqk,bhkd->bhqd", p, v)
    return (lambda x, *d: x.permute(*d))(o, 0, 2, 1, 3).reshape(B, Sq, Hq * Dh) @ wo
```

```python
import re

class Asm:
    def __init__(self):
        self.lines = []
        self.vm = []
        self.lg = []
    def raw(self, s):
        self.lines.append(s)
    def __call__(self, s):
        self.lines.append("  " + s)
    def label(self, s):
        self.lines.append(s + ":")
    def comment(self, s):
        self.lines.append("  ; " + s)
    def vmem(self, s, tag):
        self(s); self.vm.append(tag)
        assert len(self.vm) <= 63, f"too many outstanding vmem at {s}: {len(self.vm)}"
    def ds(self, s, tag):
        self(s); self.lg.append(tag)
    def _need(self, q, tags):
        if not isinstance(tags, (list, tuple, set)): tags = [tags]
        idx = -1
        for i, t in enumerate(q):
            if t in tags: idx = i
        return idx
    def wait(self, vm=None, lg=None, lg0=False, vm0=False):
        parts = []
        if vm0:
            if self.vm: parts.append("vmcnt(0)")
            self.vm = []
        elif vm is not None:
            idx = self._need(self.vm, vm)
            if idx >= 0:
                n = len(self.vm) - idx - 1
                parts.append(f"vmcnt({n})")
                self.vm = self.vm[idx+1:]
        if lg0:
            parts.append("lgkmcnt(0)")
            self.lg = []
        elif lg is not None:
            idx = self._need(self.lg, lg)
            if idx >= 0:
                n = len(self.lg) - idx - 1
                if n > 15: n = 15
                parts.append(f"lgkmcnt({n})")
                self.lg = self.lg[len(self.lg)-n:] if n else []
        if parts:
            self("s_waitcnt " + " ".join(parts))
            return True
        return False
    def text(self):
        return "\n".join(self.lines) + "\n"

REG = re.compile(r"\b([vas])(\d+)\b|\b([vas])\[(\d+):(\d+)\]")
def regs(op):
    out = set()
    for m in REG.finditer(op):
        if m.group(1): out.add((m.group(1), int(m.group(2))))
        else:
            for i in range(int(m.group(4)), int(m.group(5)) + 1): out.add((m.group(3), i))
    if re.search(r"\bvcc\b", op): out.add(("s", "vcc"))
    if re.search(r"\bm0\b", op): out.add(("s", "m0"))
    if re.search(r"\bexec\b", op): out.add(("s", "exec"))
    return out
TRANS = ("v_exp_f32", "v_rcp_f32", "v_log_f32", "v_rsq_f32", "v_sqrt_f32")
def split_ops(s):
    out, depth, cur = [], 0, ""
    for ch in s:
        if ch == "[": depth += 1
        if ch == "]": depth -= 1
        if ch == "," and depth == 0:
            out.append(cur.strip()); cur = ""
        else: cur += ch
    if cur.strip(): out.append(cur.strip())
    return out
class I:
    pass
def parse(line):
    t = line.split(";")[0].strip()
    if not t or t.endswith(":") or t.startswith("."): return None
    sp = t.split(None, 1)
    mn = sp[0]; ops = split_ops(sp[1]) if len(sp) > 1 else []
    x = I(); x.mn = mn; x.text = t; x.w = set(); x.r = set(); x.kind = "other"; x.states = 1
    x.A = x.B = x.C = set(); x.passes = 0
    if mn == "s_nop":
        x.states = int(ops[0], 0) + 1
    elif mn.startswith("v_mfma"):
        x.kind = "mfma"; x.w = regs(ops[0]); x.A = regs(ops[1]); x.B = regs(ops[2]); x.C = regs(ops[3]); x.r = x.A | x.B | x.C
        x.passes = 8 if "32x32x16" in mn else 4
    elif mn.startswith("v_cmp"):
        x.kind = "valu"; x.w = regs(ops[0]); x.r = set().union(*[regs(o) for o in ops[1:]])
    elif mn.startswith("v_readfirstlane") or mn.startswith("v_readlane"):
        x.kind = "valu"; x.w = regs(ops[0]); x.r = set().union(*[regs(o) for o in ops[1:]]); x.rl = True
    elif mn.startswith("v_permlane"):
        x.kind = "valu"; x.w = regs(ops[0]) | regs(ops[1]); x.r = set(x.w)
    elif mn.startswith("v_"):
        x.kind = "valu"; x.w = regs(ops[0]); x.r = set().union(*[regs(o) for o in ops[1:]]) if len(ops) > 1 else set()
        if mn.startswith(("v_fmac", "v_dot2c")): x.r |= x.w
        if mn.startswith("v_cndmask") and len(ops) == 3: x.r.add(("s", "vcc"))
    elif mn.startswith("ds_read"):
        x.kind = "ds"; x.w = regs(ops[0]); x.r = regs(ops[1])
    elif mn.startswith("ds_"):
        x.kind = "ds"; x.r = set().union(*[regs(o) for o in ops])
    elif mn.startswith("buffer_load"):
        x.kind = "vmem"
        if t.rstrip().endswith("lds"):
            x.r = set().union(*[regs(o) for o in ops]) | {("s", "m0")}; x.dma = True
        else:
            x.w = regs(ops[0]); x.r = set().union(*[regs(o) for o in ops[1:]])
    elif mn.startswith("buffer_store") or mn.startswith("buffer_atomic"):
        x.kind = "vmem"; x.r = set().union(*[regs(o) for o in ops]); x.sdata = regs(ops[0]) if ("x4" in mn or "x3" in mn) else set()
    elif mn.startswith("s_"):
        x.kind = "salu"
        if mn.startswith(("s_cmp", "s_cbranch", "s_branch", "s_waitcnt", "s_barrier", "s_endpgm", "s_setprio", "s_sleep")):
            x.r = set().union(*[regs(o) for o in ops]) if ops else set()
            if "vcc" in mn: x.r.add(("s", "vcc"))
        else:
            x.w = regs(ops[0]); x.r = set().union(*[regs(o) for o in ops[1:]]) if len(ops) > 1 else set()
    return x
def check_hazards(lines):
    ins = [(n, parse(l)) for n, l in enumerate(lines)]
    ins = [(n, x) for n, x in ins if x is not None]
    errs = []
    for j, (nj, c) in enumerate(ins):
        dist = 0
        for i in range(j - 1, max(-1, j - 40), -1):
            p = ins[i][1]
            need = 0
            vg = lambda s: {r for r in s if r[0] in "va"}
            if p.kind == "valu":
                pw = vg(p.w)
                if c.kind == "mfma" and pw & c.r: need = max(need, 2)
                if c.mn.startswith("v_permlane") and pw & c.r: need = max(need, 2)
                if c.mn.startswith(("v_readfirstlane", "v_readlane")) and pw & c.r: need = max(need, 1)
                if p.mn.startswith(TRANS) and c.kind == "valu" and not c.mn.startswith(TRANS) and pw & c.r: need = max(need, 1)
                ps = {r for r in p.w if r[0] == "s"}
                if ps and c.kind == "vmem" and ps & c.r: need = max(need, 5)
                if ps and c.kind == "valu" and ps & c.r: need = max(need, 2)
                if ps and c.kind == "salu" and ps & c.r and not c.mn.startswith("s_cbranch"): need = max(need, 1)
            if p.kind == "mfma":
                big = p.passes == 8
                if c.kind == "mfma":
                    if p.w & (c.A | c.B): need = max(need, 12 if big else 8)
                    if p.w & c.C and not (p.w == c.C and p.passes == c.passes): need = max(need, 10 if big else 6)
                    if p.w & c.w and not (p.w == c.C) : need = max(need, 10 if big else 6)
                elif c.kind in ("valu", "ds", "vmem"):
                    if p.w & (c.r | c.w): need = max(need, 12 if big else 8)
                    if c.kind == "valu" and p.C & c.w: need = max(need, 7 if big else 3)
            if p.kind == "salu" and ("s", "m0") in p.w and getattr(c, "dma", False): need = max(need, 1)
            if p.kind == "vmem" and getattr(p, "sdata", None) and c.kind in ("valu",) and p.sdata & c.w: need = max(need, 2)
            if p.kind == "vmem" and getattr(p, "sdata", None) and c.kind in ("ds", "vmem", "mfma") and p.sdata & c.w: need = max(need, 1)
            if p.kind == "salu" and ("s", "exec") in p.w and c.kind in ("mfma",): need = max(need, 0)
            if need > dist:
                errs.append(f"line {nj}: '{c.text}' needs {need} wait states after '{p.text}' (has {dist})")
            dist += p.states
            if dist >= 20: break
    return errs
```

```python
import sys, math, struct
from asmlib import Asm, check_hazards

KN = "standalone__gqa_block_cached__near_ridge_kernel"
def f32hex(x): return "0x%08x" % struct.unpack("<I", struct.pack("<f", x))[0]
CSC = math.log2(math.e) / math.sqrt(128.0)
T0 = 20.0
K1K = 1024
WS_NONCE = 0
WS_FO = 0x10000
WS_FP = 0x40000
WS_STAMP = 0x80000
WS_O = 0x100000
WS_P = 0x1000000
WS_DBG = 0x2000000
SLOT = [96*K1K, 0, 128*K1K]
KPIECE = [64*K1K, 80*K1K, 32*K1K, 48*K1K, 0, 16*K1K, 128*K1K, 144*K1K]
VPIECE = [96*K1K, 112*K1K, 64*K1K, 80*K1K, 32*K1K, 48*K1K, 0, 16*K1K]
RS = [140*K1K, 120*K1K, 100*K1K, 80*K1K, 60*K1K, 40*K1K, 20*K1K, 0]
sX, sK, sV, sWQ, sWO, sOUT, sWS = "s[8:11]", "s[12:15]", "s[16:19]", "s[20:23]", "s[24:27]", "s[28:31]", "s[32:35]"
sW, sG, sNB, sB, sH, sL = "s3", "s4", "s5", "s6", "s7", "s36"
sNONCE, sW4K, sW5K, sCH, sXO, sWOF, sT0_, sT1_ = "s37", "s38", "s39", "s56", "s57", "s58", "s59", "s60"
sXB, sWB = "s61", "s62"
sRET = "s[64:65]"
sCNT = "s66"
sT2_, sT3_ = "s67", "s68"
STAMP0 = 70
vLANE, vL16 = 0, 1
vKg, vVg, vOg, vOR, vKa, vT = 2, 6, 10, 15, 16, 24
vVa, vOa = 16, 18
vQ, vS, vNEG, vSP, vP = 32, 64, 96, 112, 128
vO = 32
vLACC, vLA = 112, 116
vQACC = 128
vXg, vWg, vXaA, vWaA, vXaB, vWaB = 192, 196, 200, 204, 208, 212
def vr(b, n=4): return f"v[{b}:{b+n-1}]"
def ar(b, n=4): return f"a[{b}:{b+n-1}]"

class Gen:
    def __init__(self, prof=False, dbg=None, kpos=None, opts=None):
        self.a = Asm(); self.prof = prof; self.dbg = dbg; self.nst = 0
        self.kpos = kpos or {-1: [0, 1], 3: [2, 3]}
        self.o = opts or {}
        self.vissued = {}
    def stamp(self):
        if not self.prof: return
        a = self.a
        a(f"s_memtime s[{STAMP0+2*self.nst}:{STAMP0+2*self.nst+1}]"); a.wait(lg0=True); self.nst += 1
        assert STAMP0 + 2*self.nst <= 102
    def dma_x(self, slot, tag):
        a = self.a; out = []
        for i in range(4):
            def f(i=i):
                if i == 0: a(f"s_add_u32 m0, {sW4K}, {SLOT[slot]}"); a("s_nop 0")
                a.vmem(f"buffer_load_dwordx4 v{vXg+i}, {sX}, {sXO} offen offset:{i*1024} lds", tag)
            out.append(f)
        return out
    def dma_w(self, slot, tag):
        a = self.a; out = []
        for i in range(4):
            def f(i=i):
                if i == 0: a(f"s_add_u32 m0, {sW4K}, {SLOT[slot]+16384}"); a("s_nop 0")
                a.vmem(f"buffer_load_dwordx4 v{vWg+i}, {sWQ}, {sWOF} offen offset:{i*1024} lds", tag)
            out.append(f)
        return out
    def adv_chunk(self):
        a = self.a
        a(f"s_add_u32 {sCH}, {sCH}, 1"); a(f"s_cmp_eq_u32 {sCH}, 10"); a(f"s_cselect_b32 {sCH}, 0, {sCH}")
        self.set_chunk()
    def set_chunk(self):
        a = self.a
        a(f"s_lshl_b32 {sXO}, {sCH}, 7"); a(f"s_add_u32 {sXO}, {sXO}, {sXB}")
        a(f"s_lshl_b32 {sWOF}, {sCH}, 19"); a(f"s_add_u32 {sWOF}, {sWOF}, {sWB}")
    def dma_k(self, p):
        a = self.a; out = []
        for i in range(4):
            def f(i=i):
                if i == 0:
                    a(f"s_add_u32 m0, {sW4K}, {KPIECE[p]}"); a(f"s_add_u32 {sT0_}, {sW4K}, {p*16384}")
                a.vmem(f"buffer_load_dwordx4 v{vKg+i}, {sK}, {sT0_} offen offset:{i*1024} nt lds", f"K{p}")
            out.append(f)
        return out
    def dma_v(self, p, fine=False):
        a = self.a; out = []
        slab, pp = p // 4, p % 4
        for i in range(4):
            def f(i=i):
                self.vissued[p] = self.vissued.get(p, 0) + 1
                if not fine:
                    if i == 0:
                        a(f"s_add_u32 m0, {sW4K}, {VPIECE[p]}")
                        a(f"s_lshl_b32 {sT1_}, {sW4K}, 1"); a(f"s_add_u32 {sT1_}, {sT1_}, {pp*32768 + slab*128}")
                    a.vmem(f"buffer_load_dwordx4 v{vVg+i}, {sV}, {sT1_} offen offset:{i*1024} nt lds", f"V{p}")
                else:
                    a(f"s_lshr_b32 {sT1_}, {sW4K}, 2"); a(f"s_add_u32 m0, {sT1_}, {VPIECE[p] + i*4096}")
                    a(f"s_lshr_b32 {sT1_}, {sW4K}, 1"); a(f"s_add_u32 {sT1_}, {sT1_}, {pp*32768 + slab*128 + i*8192}")
                    a.vmem(f"buffer_load_dwordx4 v{vVg}, {sV}, {sT1_} offen nt lds", f"V{p}_{i}")
            out.append(f)
        return out
    def dma_o(self, sb):
        a = self.a; out = []
        p, slab = sb % 4, sb // 4
        for k in range(5):
            def f(k=k):
                if k == 0:
                    a(f"s_add_u32 {sT2_}, {sNB}, {p}"); a(f"s_and_b32 {sT2_}, {sT2_}, 3")
                    a(f"s_mul_i32 {sT2_}, {sT2_}, {128*1280}"); a(f"s_lshl_b32 {sT3_}, {sW5K}, 2")
                    a(f"s_add_u32 {sT2_}, {sT2_}, {sT3_}"); a(f"s_add_u32 m0, {sW5K}, {RS[sb]}")
                    a(f"s_add_u32 {sT2_}, {sT2_}, {slab*64*1280}")
                if k == 4:
                    a(f"s_add_u32 m0, {sW5K}, {RS[sb]+4096}"); a("s_nop 0")
                off = k*1024 if k < 4 else 0
                a.vmem(f"buffer_load_dwordx4 v{vOg+k}, {sWO}, {sT2_} offen offset:{off} {self.o.get('wo_flags','')} lds", f"R{sb}")
            out.append(f)
        return out
    def prologue(self):
        a = self.a
        a("s_cmp_ge_u32 s2, 256"); a("s_cbranch_scc1 L_end")
        a("s_load_dwordx16 s[40:55], s[0:1], 0")
        if self.prof:
            a(f"s_memrealtime s[98:99]")
            a(f"s_memtime s[{STAMP0}:{STAMP0+1}]"); self.nst = 1
        a("v_lshrrev_b32 v24, 6, v0"); a("v_and_b32 v0, 63, v0")
        a(f"v_readfirstlane_b32 {sW}, v24")
        a(f"s_and_b32 {sG}, s2, 7"); a("s_lshr_b32 s59, s2, 3"); a(f"s_and_b32 {sNB}, s59, 3"); a(f"s_lshr_b32 {sB}, s59, 2")
        a(f"s_lshl_b32 {sH}, {sG}, 2"); a(f"s_add_u32 {sH}, {sH}, {sNB}")
        a(f"s_lshl_b32 {sL}, {sB}, 5"); a(f"s_add_u32 {sL}, {sL}, {sH}")
        a(f"s_lshl_b32 {sW4K}, {sW}, 12"); a(f"s_mul_i32 {sW5K}, {sW}, 5120")
        a(f"s_mul_i32 {sXB}, {sW}, {32*1280}"); a(f"s_lshl_b32 {sWB}, {sW}, 17")
        a(f"s_mul_i32 {sCH}, {sNB}, 5"); a(f"s_lshr_b32 {sCH}, {sCH}, 1"); a(f"s_mul_i32 s59, {sB}, 5"); a("s_lshr_b32 s59, s59, 2")
        a(f"s_add_u32 {sCH}, {sCH}, s59"); a(f"s_cmp_ge_u32 {sCH}, 10"); a("s_cselect_b32 s59, 10, 0"); a(f"s_sub_u32 {sCH}, {sCH}, s59")
        self.set_chunk()
        a("v_lshlrev_b32 v1, 4, v0")
        a("v_lshrrev_b32 v24, 3, v0"); a("v_lshrrev_b32 v25, 4, v0"); a("v_and_b32 v26, 7, v0"); a("v_and_b32 v27, 15, v0")
        a("v_lshrrev_b32 v28, 5, v0"); a("v_and_b32 v29, 31, v0")
        a("s_movk_i32 s59, 1280")
        for i in range(4):
            a(f"v_add_u32 v30, {4*i}, v25"); a("v_and_b32 v30, 7, v30"); a("v_xor_b32 v30, v26, v30"); a("v_lshlrev_b32 v30, 4, v30")
            a(f"v_mad_u32_u24 v30, v24, s59, v30"); a(f"v_add_u32 v{vXg+i}, {i*8*1280 - i*1024}, v30")
        a("v_lshlrev_b32 v30, 2, v25"); a("v_xor_b32 v30, v27, v30"); a("v_lshlrev_b32 v30, 4, v30"); a("v_lshl_add_u32 v30, v25, 13, v30")
        for i in range(4):
            a(f"v_add_u32 v{vWg+i}, {i*4*8192 - i*1024}, v30")
        for i in range(4):
            a(f"v_add_u32 v30, {4*i}, v25"); a("v_xor_b32 v30, v27, v30"); a("v_lshlrev_b32 v30, 4, v30"); a(f"v_lshl_add_u32 v{vKg+i}, v25, 8, v30")
        a("s_waitcnt lgkmcnt(0)")
        a(f"s_mul_i32 s59, {sB}, 163840"); a("s_add_u32 s8, s40, s59"); a("s_addc_u32 s9, s41, 0"); a("s_mov_b32 s10, 163840"); a("s_mov_b32 s11, 0x20000")
        a(f"s_lshl_b32 s59, {sH}, 8"); a("s_add_u32 s20, s46, s59"); a("s_addc_u32 s21, s47, 0"); a("s_sub_u32 s22, 5242880, s59"); a("s_mov_b32 s23, 0x20000")
        a(f"s_lshl_b32 s59, {sL}, 17"); a("s_add_u32 s12, s42, s59"); a("s_addc_u32 s13, s43, 0"); a("s_mov_b32 s14, 131072"); a("s_mov_b32 s15, 0x20000")
        for f in self.dma_x(0, "c0") + self.dma_w(0, "c0"): f()
        self.adv_chunk()
        for f in self.dma_x(1, "c1") + self.dma_w(1, "c1"): f()
        self.adv_chunk()
        for p in self.kpos.get(-1, []):
            for f in self.dma_k(p): f()
        a(f"s_lshl_b32 s59, {sL}, 17")
        a("s_add_u32 s16, s44, s59"); a("s_addc_u32 s17, s45, 0"); a("s_mov_b32 s18, 131072"); a("s_mov_b32 s19, 0x20000")
        a(f"s_mul_i32 s59, {sG}, {512*1280}"); a(f"s_mul_i32 s60, {sNB}, 320"); a("s_add_u32 s59, s59, s60")
        a("s_add_u32 s24, s48, s59"); a("s_addc_u32 s25, s49, 0"); a("s_sub_u32 s26, 5242880, s59"); a("s_mov_b32 s27, 0x20000")
        a("s_mov_b32 s28, s50"); a("s_mov_b32 s29, s51"); a("s_mov_b32 s30, 1310720"); a("s_mov_b32 s31, 0x20000")
        a("s_mov_b32 s32, s54"); a("s_mov_b32 s33, s55"); a("s_mov_b32 s34, 0x10000000"); a("s_mov_b32 s35, 0x20000")
        a(f"s_lshl_b32 s59, {sB}, 7")
        a(f"s_load_dword {sNONCE}, s[54:55], s59")
        a("v_and_b32 v30, 1, v25"); a("v_lshlrev_b32 v30, 2, v30"); a("v_xor_b32 v30, v26, v30"); a("v_lshlrev_b32 v30, 4, v30"); a("v_lshl_add_u32 v30, v24, 8, v30")
        for i in range(4):
            a(f"v_add_u32 v{vVg+i}, {i*1024}, v30")
        a("s_movk_i32 s59, 3277"); a("s_movk_i32 s60, 1280")
        for k in range(5):
            a(f"v_add_u32 v30, {64*k}, v0"); a("v_mul_u32_u24 v31, s59, v30"); a("v_lshrrev_b32 v31, 16, v31")
            a("v_mul_u32_u24 v23, 20, v31"); a("v_sub_u32 v30, v30, v23"); a("v_lshlrev_b32 v30, 4, v30")
            a("v_mad_u32_u24 v30, v31, s60, v30")
            a(f"v_subrev_u32 v{vOg+k}, {k*1024 if k < 4 else 0}, v30")
        a("v_lshrrev_b32 v30, 1, v29"); a("v_and_b32 v30, 7, v30"); a("v_xor_b32 v30, v28, v30"); a("v_lshlrev_b32 v30, 4, v30")
        a("v_lshl_add_u32 v30, v29, 7, v30"); a(f"v_add_u32 v30, {sW4K}, v30")
        for s in range(4):
            a(f"v_xor_b32 v{vXaB+s}, {s<<5}, v30"); a(f"v_add_u32 v{vXaA+s}, {96*K1K}, v{vXaB+s}")
        a("v_lshrrev_b32 v22, 2, v27"); a("v_and_b32 v23, 1, v25"); a("v_lshlrev_b32 v23, 5, v23")
        a("v_and_b32 v30, 1, v27"); a("v_lshl_add_u32 v23, v30, 4, v23"); a("v_bfe_u32 v30, v27, 1, 1"); a("v_lshl_add_u32 v23, v30, 3, v23")
        a("v_lshl_add_u32 v30, v28, 3, v22"); a("v_lshlrev_b32 v30, 8, v30"); a("v_add_u32 v30, v30, v23"); a("v_lshl_add_u32 v30, v22, 6, v30")
        a("v_add_u32 v30, 16384, v30")
        for d in range(4):
            a(f"v_xor_b32 v{vWaB+d}, {d<<6}, v30"); a(f"v_add_u32 v{vWaA+d}, {96*K1K}, v{vWaB+d}")
        a("v_xor_b32 v30, v28, v27"); a("v_lshlrev_b32 v30, 4, v30"); a("v_lshl_add_u32 v30, v29, 8, v30"); a(f"v_add_u32 v30, {32*K1K}, v30")
        for s in range(8):
            a(f"v_xor_b32 v{vKa+s}, {s<<5}, v30")
    def p1_reads(self, i):
        a = self.a; par = i & 1; slot = i % 3
        xa, wa, base = (vXaB, vWaB, 0) if slot == 1 else (vXaA, vWaA, SLOT[slot] - 96*K1K)
        out = []
        for s in range(4):
            out.append(lambda s=s: a.ds(f"ds_read_b128 {ar(128+16*par+4*s)}, v{xa+s} offset:{base}", f"B{i}_{s}"))
            for d in range(4):
                for u in range(2):
                    out.append(lambda s=s, d=d, u=u: a.ds(f"ds_read_b64_tr_b16 {ar(64*par+16*s+4*d+2*u, 2)}, v{wa+d} offset:{base+s*4096+u*1024}", f"A{i}_{s}_{d}"))
        return out
    def phase1(self):
        a = self.a
        a.wait(vm="c0", lg0=True); a("s_barrier")
        a(f"s_add_u32 {sNONCE}, {sNONCE}, 1"); a(f"s_cmp_eq_u32 {sNONCE}, 0"); a(f"s_cselect_b32 {sNONCE}, 1, {sNONCE}")
        self.stamp()
        rd = self.p1_reads(0)
        for f in rd[:12]: f()
        rd = rd[12:]
        pend = self.dma_x(2, "c2") + self.dma_w(2, "c2")
        dgaps = [1, 2, 3, 4, 6, 8, 9, 10]
        for i in range(10):
            par = i & 1
            for k in range(16):
                s, d = k // 4, k % 4
                if k == 12:
                    tags = [f"c{i+1}"] if i < 9 else ["K0", "K1", "K2", "K3"]
                    a.wait(vm=tags, lg0=True); a("s_barrier")
                    if i < 9: rd = self.p1_reads(i + 1)
                    else: rd = self.k_reads(0)
                    assert not pend
                    if i + 3 < 10: pend = self.dma_x(i % 3, f"c{i+3}") + self.dma_w(i % 3, f"c{i+3}")
                    elif i == 7: pend = self.dma_k(4) + self.dma_k(5)
                    elif i == 8: pend = self.dma_k(6) + self.dma_k(7)
                    else: pend = []
                    dgaps = [13, 15, 1, 3, 5, 7, 9, 10]
                a.wait(lg=[f"A{i}_{s}_{d}", f"B{i}_{s}"])
                c = vr(vQACC+16*d, 16) if not (i == 0 and s == 0) else "0"
                a(f"v_mfma_f32_32x32x16_bf16 {vr(vQACC+16*d,16)}, {ar(64*par+16*s+4*d)}, {ar(128+16*par+4*s)}, {c}")
                for _ in range(3):
                    if rd: rd.pop(0)()
                if k in dgaps and pend: pend.pop(0)()
                if k == 11:
                    if i + 3 < 10: self.adv_chunk()
                    for p in self.kpos.get(i, []):
                        for f in self.dma_k(p): f()
        assert not rd and not pend
        a(f"s_mov_b32 {sT2_}, {f32hex(CSC)}")
        a("s_nop 7")
        for d in range(4):
            for r in range(16): a(f"v_mul_f32 v{vQACC+16*d+r}, {sT2_}, v{vQACC+16*d+r}")
            for r in range(8): a(f"v_cvt_pk_bf16_f32 v{vQ+8*d+r}, v{vQACC+16*d+2*r}, v{vQACC+16*d+2*r+1}")
        self.stamp()
    def k_reads(self, t):
        a = self.a; out = []
        kb = KPIECE[t//2] + (t & 1)*8192
        base = 32*K1K if t < 8 else (0 if t < 12 else 128*K1K)
        if t in (8, 12):
            delta = -32*K1K if t == 8 else 128*K1K
            for s in range(8): out.append(lambda s=s: a(f"v_add_u32 v{vKa+s}, {delta & 0xffffffff}, v{vKa+s}"))
        for s in range(8):
            out.append(lambda s=s: a.ds(f"ds_read_b128 {ar(32*(t&1)+4*s)}, v{vKa+s} offset:{kb-base}", f"K{t}_{s}"))
        return out
    def exp_ops(self, t):
        a = self.a; S = vS + 16*(t & 1); P = vP + 8*t; out = []
        def e(k): out.append(lambda: a(f"v_exp_f32 v{vT+k%4}, v{S+k}"))
        def c(j): out.append(lambda: a(f"v_cvt_pk_bf16_f32 v{P+j}, v{vT+(2*j)%4}, v{vT+(2*j+1)%4}"))
        e(0); e(1)
        for j in range(8):
            if 2*j+2 < 16: e(2*j+2)
            else: out.append(lambda: a("s_nop 0"))
            c(j)
            if 2*j+3 < 16: e(2*j+3)
        return out
    def check_ops(self, t):
        a = self.a; P = vP + 8*t; out = []
        out.append(lambda: a(f"v_or3_b32 v{vOR}, v{P}, v{P+1}, v{P+2}"))
        out.append(lambda: a(f"v_or3_b32 v{vOR}, v{vOR}, v{P+3}, v{P+4}"))
        out.append(lambda: a(f"v_or3_b32 v{vOR}, v{vOR}, v{P+5}, v{P+6}"))
        out.append(lambda: a(f"v_or_b32 v{vOR}, v{vOR}, v{P+7}"))
        out.append(lambda: a(f"v_and_b32 v{vOR}, 0x40004000, v{vOR}"))
        def fin():
            a(f"v_cmp_ne_u32 vcc, 0, v{vOR}"); a(f"s_cbranch_vccnz L_rare{t}"); a.label(f"L_back{t}")
        out.append(fin)
        return out
    def softmax_ops(self, t):
        a = self.a; S = vS + 16*(t & 1); out = []
        if t == 0:
            out.append(lambda: a(f"v_max3_f32 v{vT}, v{S}, v{S+1}, v{S+2}"))
            for j in range(6): out.append(lambda j=j: a(f"v_max3_f32 v{vT}, v{vT}, v{S+3+2*j}, v{S+4+2*j}"))
            out.append(lambda: a(f"v_max_f32 v{vT}, v{vT}, v{S+15}"))
            out.append(lambda: (a(f"v_mov_b32 v{vT+1}, v{vT}"), a("s_nop 1"), a(f"v_permlane32_swap_b32 v{vT}, v{vT+1}"), a("s_nop 1")))
            out.append(lambda: a(f"v_max_f32 v{vT}, v{vT}, v{vT+1}"))
            out.append(lambda: a(f"v_sub_f32 v{vNEG}, {f32hex(-T0)}, v{vT}"))
            for r in range(1, 16): out.append(lambda r=r: a(f"v_mov_b32 v{vNEG+r}, v{vNEG}"))
        if t <= 1:
            for r in range(16): out.append(lambda r=r: a(f"v_add_f32 v{S+r}, v{S+r}, v{vNEG}"))
        out += self.exp_ops(t)
        if t >= 1: out += self.check_ops(t)
        return out
    def phase2(self):
        a = self.a
        pend = []
        queue = [("V", 0), ("V", 1), ("V", 2), ("V", 3), ("V", 4), ("V", 5), ("V", 6), ("V", 7)]
        avail = {0: -1, 1: -1, 2: 5, 3: 5, 4: 9, 5: 9, 6: 13, 7: 13}
        pace = self.o.get("pace2", [1,1,1,1,1,1,1,1,2,2,2,2,2,2,2,2])
        self.vq = queue
        for t in range(16):
            rd = []
            if t + 1 < 16:
                if (t + 1) % 2 == 0 and t >= 3:
                    k = (t + 1) // 2
                    a.wait(vm=f"K{k}"); a("s_barrier")
                rd = self.k_reads(t + 1)
            va = self.softmax_ops(t - 1) if t >= 1 else []
            nd = pace[t]
            for s in range(8):
                a.wait(lg=f"K{t}_{s}")
                c = vr(vS+16*(t&1), 16) if s else ("0" if t <= 1 else vr(vNEG, 16))
                a(f"v_mfma_f32_32x32x16_bf16 {vr(vS+16*(t&1),16)}, {ar(32*(t&1)+4*s)}, {vr(vQ+4*s)}, {c}")
                if s < 2:
                    n = (len(rd) + 1) // 2 if s == 0 else len(rd)
                    cnt = n
                    for _ in range(n): rd.pop(0)()
                    while nd > 0 and cnt < 6:
                        if not pend and queue and avail[queue[0][1]] <= t:
                            p = queue.pop(0)[1]; pend = self.dma_v(p, fine=(p == 7))
                        if not pend: break
                        pend.pop(0)(); nd -= 1; cnt += 1
                    if s == 1 and va:
                        a("s_nop 1") if t + 1 < 16 else a("s_nop 9")
                else:
                    n = -(-len(va) // (8 - s))
                    for _ in range(n): va.pop(0)()
            assert not va and not rd
        self.pend_v = pend
        a("s_nop 11")
        for f in self.softmax_ops(15): f()
        self.stamp()
    def rare_paths(self):
        a = self.a
        for t in range(1, 16):
            a.label(f"L_rare{t}")
            a(f"s_call_b64 {sRET}, L_rescale")
            for f in self.exp_ops(t): f()
            a("s_nop 1")
            a(f"s_branch L_back{t}")
        a.label("L_rescale")
        a("s_nop 15"); a("s_nop 15")
        a(f"v_max3_f32 v{vT}, v{vS}, v{vS+1}, v{vS+2}")
        for j in range(14): a(f"v_max3_f32 v{vT}, v{vT}, v{vS+3+2*j}, v{vS+4+2*j}")
        a(f"v_max_f32 v{vT}, v{vT}, v{vS+31}")
        a(f"v_mov_b32 v{vT+1}, v{vT}"); a("s_nop 1"); a(f"v_permlane32_swap_b32 v{vT}, v{vT+1}"); a("s_nop 1")
        a(f"v_max_f32 v{vT}, v{vT}, v{vT+1}")
        a(f"v_add_f32 v{vT}, {f32hex(T0)}, v{vT}"); a(f"v_ceil_f32 v{vT}, v{vT}"); a(f"v_max_f32 v{vT}, 0, v{vT}")
        a(f"v_min_f32 v{vT+1}, 0x43800000, v{vT}")
        a(f"v_cvt_i32_f32 v{vT+1}, v{vT+1}"); a(f"v_sub_u32 v{vT+1}, 0, v{vT+1}")
        for r in range(32): a(f"v_sub_f32 v{vS+r}, v{vS+r}, v{vT}")
        for r in range(16): a(f"v_sub_f32 v{vNEG+r}, v{vNEG+r}, v{vT}")
        for r in range(128):
            a(f"v_lshlrev_b32 v{vT+2}, 16, v{vP+r}"); a(f"v_and_b32 v{vT+3}, 0xffff0000, v{vP+r}")
            a(f"v_ldexp_f32 v{vT+2}, v{vT+2}, v{vT+1}"); a(f"v_ldexp_f32 v{vT+3}, v{vT+3}, v{vT+1}")
            a(f"v_cvt_pk_bf16_f32 v{vP+r}, v{vT+2}, v{vT+3}")
        a("s_nop 1")
        a(f"s_setpc_b64 {sRET}")
    def v_reads(self, p, tt):
        a = self.a; out = []
        g = p*4 + tt
        base = (VPIECE[p] // 65536) * 65536
        for u in range(2):
            for d in range(2):
                for z in range(2):
                    off = VPIECE[p] - base + (32*tt + 16*u + 8*z)*128
                    out.append(lambda u=u, d=d, z=z, off=off: a.ds(f"ds_read_b64_tr_b16 {ar(16*(g%4)+8*u+4*d+2*z, 2)}, v{vVa+d} offset:{off}", f"V{g}_{u}_{d}"))
        return out
    def phase3(self):
        a = self.a
        a("v_and_b32 v27, 15, v0"); a("v_lshrrev_b32 v28, 5, v0"); a("v_lshrrev_b32 v22, 2, v27"); a("v_bfe_u32 v25, v0, 4, 1")
        a("v_lshl_add_u32 v30, v28, 2, v22")
        a("v_lshlrev_b32 v31, 5, v25")
        a("v_and_b32 v29, 3, v27"); a("v_lshl_add_u32 v29, v29, 3, v31"); a("v_lshl_add_u32 v29, v30, 7, v29")
        a("v_bfe_u32 v26, v27, 3, 1"); a("v_lshl_add_u32 v29, v26, 6, v29")
        a(f"v_add_u32 v{vVa}, 65536, v29"); a(f"v_xor_b32 v{vVa+1}, 64, v{vVa}")
        a("v_and_b32 v29, 1, v27"); a("v_lshl_add_u32 v31, v29, 4, v31"); a("v_bfe_u32 v29, v27, 1, 1"); a("v_lshl_add_u32 v31, v29, 3, v31")
        a("s_movk_i32 s59, 320"); a(f"v_mad_u32_u24 v{vOa}, v30, s59, v31")
        a(f"v_add_u32 v{vOa+1}, 65536, v{vOa}"); a(f"v_add_u32 v{vOa+2}, 131072, v{vOa}")
        a("v_bfe_u32 v29, v0, 2, 1"); a("v_cmp_eq_u32 vcc, v29, v25"); a("v_mov_b32 v29, 0x3f803f80"); a("s_nop 0")
        for r in range(4): a(f"v_cndmask_b32 v{vLA+r}, 0, v29, vcc")
        pend = self.pend_v; queue = list(self.vq)
        extra = []
        while self.vissued.get(0, 0) < 4: pend.pop(0)()
        a.wait(vm="V0", lg0=True); a("s_barrier")
        extra += self.dma_o(0)
        rd = self.v_reads(0, 0) + self.v_reads(0, 1)
        for f in rd[:8]: f()
        rd = rd[8:]
        post = []
        for g in range(32):
            p, tt = g // 4, g % 4
            slab, t = p // 4, g % 16
            g2 = g + 2
            if g2 < 32:
                p2, tt2 = g2 // 4, g2 % 4
                if tt2 == 0 or p2 == 7:
                    tag = f"V{p2}" if p2 < 7 else f"V7_{tt2}"
                    need = 4 if p2 < 7 else tt2 + 1
                    while self.vissued.get(p2, 0) < need:
                        if not pend:
                            q = queue.pop(0)[1]; pend = self.dma_v(q, fine=(q == 7))
                        pend.pop(0)()
                    a.wait(vm=tag); a("s_barrier")
                    if tt2 == 0:
                        if p2 == 3: extra += self.dma_o(1) + self.dma_o(2)
                        if p2 == 5: extra += self.dma_o(3)
                        if p2 == 7: extra += self.dma_o(4) + self.dma_o(5)
                        if p2 == 4:
                            rd.append(lambda: (a(f"v_add_u32 v{vVa}, {(-65536) & 0xffffffff}, v{vVa}"), a(f"v_add_u32 v{vVa+1}, {(-65536) & 0xffffffff}, v{vVa+1}")))
                rd += self.v_reads(p2, tt2)
            if g == 17:
                post += self.norm_ops(0)
            for u in range(2):
                for d in range(2):
                    a.wait(lg=f"V{g}_{u}_{d}")
                    o = vO + 16*(2*slab + d)
                    c = vr(o, 16) if not (t == 0 and u == 0) else "0"
                    a(f"v_mfma_f32_32x32x16_bf16 {vr(o,16)}, {ar(16*(g%4)+8*u+4*d)}, {vr(vP+8*t+4*u)}, {c}")
                    n = 0
                    while rd and n < 2: rd.pop(0)(); n += 1
                    if rd and len(rd) > 8: rd.pop(0)()
                    if d == 0:
                        if not pend and queue:
                            q = queue.pop(0)[1]; pend = self.dma_v(q, fine=(q == 7))
                        if pend: pend.pop(0)()
                        elif extra: extra.pop(0)()
                    for _ in range(2):
                        if post: post.pop(0)()
                if slab == 0:
                    c = vr(vLACC) if not (t == 0 and u == 0) else "0"
                    a(f"v_mfma_f32_16x16x32_bf16 {vr(vLACC)}, {vr(vLA)}, {vr(vP+8*t+4*u)}, {c}")
        assert not rd and not pend and not queue
        for f in post: f()
        self.extra = extra
        self.stamp()
    def ofrag(self, ks):
        return (vNEG + 4*ks) if ks < 4 else (vP + 4*(ks - 4))
    def norm_ops(self, slab):
        a = self.a; out = []
        if slab == 0:
            out.append(lambda: (a(f"v_rcp_f32 v{vOR}, v{vLACC}"), a("s_nop 0")))
        for d in range(2):
            o = vO + 16*(2*slab + d)
            for j in range(8):
                out.append(lambda o=o, j=j: a(f"v_mul_f32 v{o+2*j}, v{o+2*j}, v{vOR}"))
                out.append(lambda o=o, j=j: a(f"v_mul_f32 v{o+2*j+1}, v{o+2*j+1}, v{vOR}"))
                dst = self.ofrag(4*slab + 2*d + j//4) + j % 4
                out.append(lambda o=o, j=j, dst=dst: a(f"v_cvt_pk_bf16_f32 v{dst}, v{o+2*j}, v{o+2*j+1}"))
        return out
    def poll(self, name, nl, vaddr):
        a = self.a
        a(f"s_mov_b64 exec, {(1 << nl) - 1}"); a(f"s_mov_b32 {sCNT}, 0")
        a.label(f"L_poll{name}")
        a(f"buffer_load_dword v{vT+1}, v{vaddr}, {sWS}, 0 offen sc1")
        a(f"s_add_u32 {sCNT}, {sCNT}, 1")
        a("s_waitcnt vmcnt(0)"); a.vm = []
        a(f"v_cmp_ne_u32 vcc, {sNONCE}, v{vT+1}")
        a(f"s_cmp_ge_u32 {sCNT}, 20000"); a(f"s_cbranch_scc1 L_polld{name}")
        a(f"s_cbranch_vccnz L_poll{name}")
        a.label(f"L_polld{name}")
        a("s_mov_b64 exec, -1")
    def flag(self, base):
        a = self.a
        a(f"s_lshl_b32 {sT2_}, {sL}, 2"); a(f"s_add_u32 {sT2_}, {sT2_}, {sW}"); a(f"s_lshl_b32 {sT2_}, {sT2_}, 7"); a(f"s_add_u32 {sT2_}, {sT2_}, {base}")
        a(f"v_mov_b32 v{vT}, {sNONCE}"); a(f"v_mov_b32 v{vT+1}, 0")
        a("s_mov_b64 exec, 1")
        a.vmem(f"buffer_store_dword v{vT}, v{vT+1}, {sWS}, {sT2_} offen sc1", "flag")
        a("s_mov_b64 exec, -1")
    def wo_reads(self, sb, kk, fi):
        a = self.a; out = []
        U = RS[sb] + kk*5120
        for i in range(5):
            for z in range(2):
                off = U + z*2560 + i*64
                bi = off // 65536
                out.append(lambda i=i, z=z, off=off, bi=bi: a.ds(f"ds_read_b64_tr_b16 {ar(4*((fi+i)%15)+2*z, 2)}, v{vOa+bi} offset:{off - bi*65536}", f"W{sb}_{kk}_{i}"))
        return out
    def gemm(self, steps, first, fillers=None, pre=None):
        a = self.a; ACC = self.ACC
        fillers = fillers or []
        rd = []
        n = len(steps)
        for j in range(min(2, n)): rd += self.wo_reads(steps[j][0], steps[j][1], self.fi + 5*j)
        for f in rd[:10]: f()
        rd = rd[10:]
        for j, (sb, kk, breg, tag) in enumerate(steps):
            if j + 2 < n: rd += self.wo_reads(steps[j+2][0], steps[j+2][1], self.fi + 5*(j+2))
            if tag: a.wait(vm=tag)
            for i in range(5):
                a.wait(lg=f"W{sb}_{kk}_{i}")
                c = ACC(i) if not (first and j == 0) else "0"
                a(f"v_mfma_f32_32x32x16_bf16 {ACC(i)}, {ar(4*((self.fi+5*j+i)%15))}, {breg}, {c}")
                for _ in range(2):
                    if rd: rd.pop(0)()
                if fillers: fillers.pop(0)()
        self.fi = (self.fi + 5*n) % 15
        for f in fillers: f()
    def phase4(self):
        a = self.a
        accv = 144
        self.ACC = lambda i: vr(accv + 16*i, 16)
        self.fi = 0
        a("s_nop 9")
        for f in self.norm_ops(1): f()
        a(f"s_lshl_b32 {sT2_}, {sL}, 2"); a(f"s_add_u32 {sT2_}, {sT2_}, {sW}"); a(f"s_lshl_b32 {sT2_}, {sT2_}, 13"); a(f"s_add_u32 {sT2_}, {sT2_}, {WS_O}")
        a(f"s_add_u32 {sT3_}, {sT2_}, 4096")
        for ks in range(8):
            a.vmem(f"buffer_store_dwordx4 {vr(self.ofrag(ks))}, v{vL16}, {sWS}, {sT2_ if ks < 4 else sT3_} offen offset:{(ks%4)*1024} sc1", "Ost")
        for f in self.extra: f()
        a.wait(vm=["R0", "R4"], lg0=True) ; a("s_barrier")
        fill = self.dma_o(6) + self.dma_o(7)
        steps = [(0, kk, vr(self.ofrag(kk)), None) for kk in range(4)] + [(4, kk, vr(self.ofrag(4+kk)), None) for kk in range(4)]
        self.gemm(steps, True, fillers=fill)
        a.wait(vm="Ost")
        self.flag(WS_FO)
        self.stamp()
        a(f"v_add_u32 v{vT+2}, {sNB}, v0"); a(f"v_add_u32 v{vT+2}, 1, v{vT+2}"); a(f"v_and_b32 v{vT+2}, 3, v{vT+2}")
        a(f"s_and_b32 {sT2_}, {sL}, 0xfc"); a(f"v_add_u32 v{vT+2}, {sT2_}, v{vT+2}"); a(f"v_lshlrev_b32 v{vT+2}, 2, v{vT+2}")
        a(f"v_add_u32 v{vT+2}, {sW}, v{vT+2}"); a(f"v_lshlrev_b32 v{vT+2}, 7, v{vT+2}"); a(f"v_add_u32 v{vT+2}, {WS_FO}, v{vT+2}")
        self.poll("O", 3, vT+2)
        self.stamp()
        for p in range(1, 4):
            a(f"s_add_u32 {sT2_}, {sNB}, {p}"); a(f"s_and_b32 {sT2_}, {sT2_}, 3"); a(f"s_and_b32 {sT3_}, {sL}, 0xfc"); a(f"s_add_u32 {sT2_}, {sT2_}, {sT3_}")
            a(f"s_lshl_b32 {sT2_}, {sT2_}, 2"); a(f"s_add_u32 {sT2_}, {sT2_}, {sW}"); a(f"s_lshl_b32 {sT2_}, {sT2_}, 13"); a(f"s_add_u32 {sT2_}, {sT2_}, {WS_O}")
            a(f"s_add_u32 {sT3_}, {sT2_}, 4096")
            for ks in range(8):
                a.vmem(f"buffer_load_dwordx4 {ar(144 + 32*(p-1) + 4*ks)}, v{vL16}, {sWS}, {sT2_ if ks < 4 else sT3_} offen offset:{(ks%4)*1024} sc1", f"O{p}_{ks}")
        a("s_barrier")
        steps = []
        for p in range(1, 4):
            for slab in range(2):
                for kk in range(4):
                    ks = 4*slab + kk
                    steps.append((4*slab + p, kk, ar(144 + 32*(p-1) + 4*ks), f"O{p}_{ks}"))
        self.gemm(steps, False)
        self.stamp()
        a(f"s_lshl_b32 {sT2_}, {sB}, 2"); a(f"s_add_u32 {sT2_}, {sT2_}, {sNB}"); a(f"s_lshl_b32 s59, {sT2_}, 3")
        a(f"s_lshl_b32 {sT2_}, {sW}, 1"); a(f"s_add_u32 {sT2_}, {sT2_}, s59"); a(f"s_lshl_b32 {sT2_}, {sT2_}, 3"); a(f"s_add_u32 {sT2_}, {sT2_}, {sG}")
        a(f"s_mul_i32 {sT2_}, {sT2_}, 5120"); a(f"s_add_u32 {sT2_}, {sT2_}, {WS_P}")
        a(f"s_add_u32 {sT3_}, {sT2_}, {8*5120}"); a(f"s_add_u32 s60, {sT2_}, 4096"); a(f"s_add_u32 s63, {sT3_}, 4096")
        a("s_nop 2")
        for i in range(5):
            for sp in range(2):
                src = accv + 16*i + 8*sp; dst = 32 + 8*i + 4*sp
                for j in range(4): a(f"v_cvt_pk_bf16_f32 v{dst+j}, v{src+2*j}, v{src+2*j+1}")
                so = (sT2_ if sp == 0 else sT3_) if i < 4 else ("s60" if sp == 0 else "s63")
                a.vmem(f"buffer_store_dwordx4 {vr(dst)}, v{vL16}, {sWS}, {so} offen offset:{(i%4)*1024} sc1", "Pst")
        a(f"s_lshl_b32 {sT2_}, {sB}, 5"); a(f"s_add_u32 {sT2_}, {sT2_}, {sNB}"); a(f"s_lshl_b32 {sT2_}, {sT2_}, 2"); a(f"s_lshr_b32 {sT3_}, {sG}, 1"); a(f"s_add_u32 {sT2_}, {sT2_}, {sT3_}")
        a(f"v_lshlrev_b32 v{vT+2}, 4, v0"); a(f"v_add_u32 v{vT+2}, {sT2_}, v{vT+2}"); a(f"v_lshlrev_b32 v{vT+2}, 7, v{vT+2}"); a(f"v_add_u32 v{vT+2}, {WS_FP}, v{vT+2}")
        a.wait(vm="Pst")
        self.flag(WS_FP)
        self.stamp()
        self.poll("P", 8, vT+2)
        self.stamp()
        a(f"s_add_u32 {sT2_}, s59, {sG}"); a(f"s_mul_i32 {sT2_}, {sT2_}, {8*5120}"); a(f"s_add_u32 {sT2_}, {sT2_}, {WS_P}")
        a(f"s_lshl_b32 {sT3_}, {sW}, 10"); a(f"s_add_u32 {sT3_}, {sT3_}, {sT2_}")
        a(f"s_lshl_b32 s60, {sW}, 2"); a(f"s_add_u32 s60, s60, {sT2_}"); a(f"s_add_u32 s60, s60, 4096")
        for src in range(8):
            a.vmem(f"buffer_load_dwordx4 {vr(128+8*src)}, v{vL16}, {sWS}, {sT3_} offen sc1", f"p{src}")
            a.vmem(f"buffer_load_dword v{132+8*src}, v{vL16}, {sWS}, s60 offen sc1", f"p{src}")
            if src < 7:
                a(f"s_add_u32 {sT3_}, {sT3_}, 5120"); a(f"s_add_u32 s60, s60, 5120")
        a("v_and_b32 v24, 31, v0"); a(f"s_lshr_b32 {sT3_}, {sG}, 1"); a(f"s_lshl_b32 {sT3_}, {sT3_}, 5"); a(f"s_lshl_b32 s60, {sB}, 7"); a(f"s_add_u32 {sT3_}, {sT3_}, s60")
        a(f"v_add_u32 v24, {sT3_}, v24"); a("s_movk_i32 s60, 1280"); a("v_mul_lo_u32 v24, v24, s60")
        a("v_lshrrev_b32 v25, 5, v0"); a("v_lshl_add_u32 v24, v25, 4, v24")
        a(f"s_mul_i32 {sT2_}, {sNB}, 320"); a(f"s_and_b32 s60, {sG}, 1"); a("s_lshl_b32 s60, s60, 5"); a(f"s_add_u32 {sT2_}, {sT2_}, s60")
        a(f"s_lshl_b32 s60, {sW}, 6"); a(f"s_add_u32 {sT3_}, {sT2_}, s60")
        a(f"s_lshl_b32 s60, {sW}, 2"); a(f"s_add_u32 {sT2_}, {sT2_}, s60"); a(f"s_add_u32 {sT2_}, {sT2_}, 256")
        a("v_mov_b32 v26, 0x3f80"); a("v_mov_b32 v27, 0x3f800000")
        for src in range(8):
            a.wait(vm=f"p{src}")
            for j in range(5):
                r = 128 + 8*src + j
                if src == 0:
                    a(f"v_lshlrev_b32 v{32+2*j}, 16, v{r}"); a(f"v_and_b32 v{33+2*j}, 0xffff0000, v{r}")
                else:
                    a(f"v_lshlrev_b32 v28, 16, v{r}"); a(f"v_and_b32 v29, 0xffff0000, v{r}")
                    a(f"v_add_f32 v{32+2*j}, v{32+2*j}, v28"); a(f"v_add_f32 v{33+2*j}, v{33+2*j}, v29")
        for j in range(5): a(f"v_cvt_pk_bf16_f32 v{44+j}, v{32+2*j}, v{33+2*j}")
        a.vmem(f"buffer_store_dwordx4 v[44:47], v24, {sOUT}, {sT3_} offen", "out")
        a.vmem(f"buffer_store_dword v48, v24, {sOUT}, {sT2_} offen", "out")
        a(f"s_or_b32 s60, {sH}, {sW}"); a("s_cmp_eq_u32 s60, 0"); a("s_cbranch_scc0 L_nononce")
        a(f"s_lshl_b32 s60, {sB}, 7"); a(f"v_mov_b32 v26, {sNONCE}"); a("v_mov_b32 v27, 0"); a("s_mov_b64 exec, 1")
        a(f"buffer_store_dword v26, v27, {sWS}, s60 offen"); a("s_mov_b64 exec, -1")
        a.label("L_nononce")
        if self.prof:
            a.wait(vm0=True)
            self.stamp()
            a("s_memrealtime s[100:101]"); a("s_waitcnt lgkmcnt(0)")
            a(f"s_lshl_b32 s60, s2, 2"); a(f"s_add_u32 s60, s60, {sW}"); a("s_lshl_b32 s60, s60, 6"); a(f"s_add_u32 s60, s60, {WS_STAMP}")
            a("v_mov_b32 v27, 0"); a("s_mov_b64 exec, 1")
            vals = ["s98", "s100"] + [f"s{STAMP0+2*i}" for i in range(self.nst)]
            for i, s in enumerate(vals):
                a(f"v_mov_b32 v26, {s}"); a(f"buffer_store_dword v26, v27, {sWS}, s60 offen offset:{4*i}"); a("s_nop 0")
            a("s_mov_b64 exec, -1")
    def dump(self, regs, slot):
        a = self.a
        a("s_nop 15")
        a(f"s_lshl_b32 s60, {sL}, 2"); a(f"s_add_u32 s60, s60, {sW}"); a(f"s_mul_i32 s60, s60, {len(regs)*256}"); a(f"s_add_u32 s60, s60, {WS_DBG + slot*0x2000000}")
        a("v_lshlrev_b32 v31, 2, v0")
        for r in regs:
            a.vmem(f"buffer_store_dword v{r}, v31, {sWS}, s60 offen", "dbg"); a("s_add_u32 s60, s60, 256")
            if len(a.vm) > 50: a.wait(vm0=True)
        a.wait(vm0=True)
    def build(self):
        a = self.a
        a.raw("; @launch grid=(256,1,1) block=(256,1,1) lds=163840")
        a.raw('.amdgcn_target "amdgcn-amd-amdhsa--gfx950"'); a.raw(".text"); a.raw(f".globl {KN}"); a.raw(".p2align 8"); a.raw(f".type {KN},@function"); a.raw(f"{KN}:")
        self.prologue(); self.phase1()
        if self.dbg: self.dump(range(vQ, vQ+32), 0)
        self.phase2()
        if self.dbg: self.dump(range(vP, vP+128), 1)
        self.phase3(); self.phase4()
        a.label("L_end"); a("s_endpgm")
        self.rare_paths()
        a.raw('.section .rodata,"a"'); a.raw(".p2align 6"); a.raw(f".amdhsa_kernel {KN}")
        for l in ["next_free_vgpr 512", "next_free_sgpr 102", "accum_offset 256", "group_segment_fixed_size 0", "kernarg_size 64", "user_sgpr_count 2", "user_sgpr_kernarg_segment_ptr 1", "system_sgpr_workgroup_id_x 1"]:
            a.raw("  .amdhsa_" + l)
        a.raw(".end_amdhsa_kernel")
        errs = check_hazards(a.lines)
        for e in errs[:30]: print("HAZARD", e)
        return a.text()

if __name__ == "__main__":
    out = sys.argv[1]
    prof = "prof" in sys.argv; dbg = "dbg" in sys.argv
    open(out, "w").write(Gen(prof=prof, dbg=dbg).build())
```
